```python
import torch

def _softmax(x, axis=-1):
    return torch.softmax(x, dim=axis)
def _gelu(x):
    return torch.nn.functional.gelu(x, approximate="tanh")
def _silu(x):
    return torch.nn.functional.silu(x)
def _sigmoid(x):
    return torch.sigmoid(x)
def _layernorm(x, axis=-1, eps=1e-5):
    m = x.mean(dim=axis, keepdim=True)
    v = x.var(dim=axis, keepdim=True, unbiased=False)
    return (x - m) / torch.sqrt(v + eps)
def _scatter_add(tgt, idx, src, axis=0):
    return tgt.clone().index_add_(axis, idx, src)
def _segment_sum(src, seg, n):
    out = torch.zeros((n,) + src.shape[1:], dtype=src.dtype)
    return out.index_add_(0, seg, src)
def _pad(x, pw):
    flat = tuple(v for pair in reversed(pw) for v in pair)
    return torch.nn.functional.pad(x, flat)

kernel_name = 'recurrent_scan__gqa_block_cached__dense_activation_relu__decode'

def setup_inputs():

    _w = (lambda a: (lambda t: t.to(torch.bfloat16) if t.is_floating_point() else t)(torch.as_tensor(a)))
    def _A_setup():
        B, Sq, D = 1, 1, 512
        Hq, Hkv, Sk, Dh = 32, 8, 65536, 128
        assert Hq % Hkv == 0, (Hq, Hkv)
        return {
            "x": _w((lambda *s: torch.randn(*s, dtype=torch.bfloat16) * 0.05)(B, Sq, D)),
            "k_cache": _w((lambda *s: torch.randn(*s, dtype=torch.bfloat16) * 0.8)(B, Hkv, Sk, Dh)),
            "v_cache": _w((lambda *s: torch.randn(*s, dtype=torch.bfloat16) * 0.8)(B, Hkv, Sk, Dh)),
            "wq": _w((lambda *s: torch.randn(*s, dtype=torch.bfloat16) * 0.8)(D, Hq * Dh) * (D ** -0.5)),
            "wo": _w((lambda *s: torch.randn(*s, dtype=torch.bfloat16) * 0.8)(Hq * Dh, D) * ((Hq * Dh) ** -0.5)),
        }
    _A_in = _A_setup()

    def _B_setup():
        B, S, D, Dff = 1, 1, 512, 1792
        return {
            "x": _w((lambda *s: torch.randn(*s, dtype=torch.bfloat16) * 0.05)(B, S, D)),
            "w1": _w((lambda *s: torch.randn(*s, dtype=torch.bfloat16) * 0.2)(D, Dff)),
            "w2": _w((lambda *s: torch.randn(*s, dtype=torch.bfloat16) * 0.2)(Dff, D)),
        }
    _B_in = _B_setup()

    return {
        "A_x": _A_in["x"],
        "A_k_cache": _A_in["k_cache"],
        "A_v_cache": _A_in["v_cache"],
        "A_wq": _A_in["wq"],
        "A_wo": _A_in["wo"],
        "B_x": _B_in["x"],
        "B_w1": _B_in["w1"],
        "B_w2": _B_in["w2"],
    }

def reference(A_x, A_k_cache, A_v_cache, A_wq, A_wo, B_x, B_w1, B_w2):
    def _A_ref(x, k_cache, v_cache, wq, wo):
        B, Sq, D = x.shape
        Hq, Dh = 32, 128
        Hkv = k_cache.shape[1]
        rep = Hq // Hkv
        q = (lambda x, *d: x.permute(*d))((x @ wq).reshape(B, Sq, Hq, Dh), 0, 2, 1, 3)
        k = (lambda x, n, axis: torch.repeat_interleave(x, n, dim=axis))(k_cache, rep, axis=1)
        v = (lambda x, n, axis: torch.repeat_interleave(x, n, dim=axis))(v_cache, rep, axis=1)
        scores = torch.einsum("bhqd,bhkd->bhqk", q, k) * (Dh ** -0.5)
        p = _softmax(scores, axis=-1)
        o = torch.einsum("bhqk,bhkd->bhqd", p, v)
        return (lambda x, *d: x.permute(*d))(o, 0, 2, 1, 3).reshape(B, Sq, Hq * Dh) @ wo

    def _B_ref(x, w1, w2):
        h = torch.einsum("bsd,df->bsf", x, w1)
        zero = torch.zeros_like(h)
        h = torch.maximum(h, zero)
        return torch.einsum("bsf,fd->bsd", h, w2)

    x = A_x
    xn = _layernorm(x, axis=-1)
    s = _A_ref(xn, A_k_cache, A_v_cache, A_wq, A_wo)
    g = _silu(_B_ref(xn, B_w1, B_w2))
    return x + s * g
```

```python
import re

TRANS = ("v_exp_f32", "v_log_f32", "v_rcp_f32", "v_rsq_f32", "v_sqrt_f32", "v_sin_f32", "v_cos_f32")

def regs_of(tok):
    tok = tok.strip()
    m = re.fullmatch(r"-?\|?([vsa])(\d+)\|?", tok)
    if m: return {(m.group(1), int(m.group(2)))}
    m = re.fullmatch(r"-?([vsa])\[(\d+):(\d+)\]", tok)
    if m: return {(m.group(1), i) for i in range(int(m.group(2)), int(m.group(3)) + 1)}
    if tok == "vcc": return {("s", 106), ("s", 107)}
    if tok == "vcc_lo": return {("s", 106)}
    if tok == "vcc_hi": return {("s", 107)}
    if tok == "exec": return {("s", 126), ("s", 127)}
    return set()

class Ins:
    def __init__(self, text):
        self.text = text
        t = text.split(";")[0].strip()
        parts = t.split(None, 1)
        self.op = parts[0]
        rest = parts[1] if len(parts) > 1 else ""
        ops = []; depth = 0; cur = ""
        for ch in rest:
            if ch == "[": depth += 1
            if ch == "]": depth -= 1
            if ch == "," and depth == 0:
                ops.append(cur); cur = ""
            else: cur += ch
        ops.append(cur)
        last = ops[-1].strip().split()
        self.mods = " ".join(last[1:]) if last else ""
        if last: ops[-1] = last[0]
        self.ops = [o.strip() for o in ops if o.strip()]
        op = self.op
        self.mfma = op.startswith("v_mfma")
        self.valu = op.startswith("v_") and not self.mfma
        self.trans = any(op.startswith(x) for x in TRANS)
        self.dot = op.startswith("v_dot")
        self.dpp = "_dpp" in op
        self.perml = op.startswith("v_permlane")
        self.rdlane = op.startswith("v_readlane") or op.startswith("v_readfirstlane")
        self.vmem = op.startswith("buffer_") or op.startswith("global_")
        self.ds = op.startswith("ds_")
        self.store = (self.vmem and ("store" in op or "atomic" in op))
        r = [regs_of(o) for o in self.ops]
        self.dst = set(); self.src = set(); self.srcC = set(); self.srcAB = set(); self.data = set()
        if self.mfma:
            self.dst = r[0]; self.srcAB = r[1] | r[2]; self.srcC = r[3]; self.src = self.srcAB | self.srcC
        elif self.valu:
            self.dst = set(r[0])
            for x in r[1:]: self.src |= x
            if self.perml: self.dst |= r[1]; self.src |= r[0]
            if op.startswith(("v_fmac", "v_dot2c", "v_mac")) or self.dpp: self.src |= r[0]
            if op.startswith("v_cndmask") and len(r) == 3: self.src |= regs_of("vcc")
            if self.dot:
                self.srcC = r[0] if op.startswith("v_dot2c") else r[3]
                self.srcAB = r[1] | r[2]
        elif self.vmem:
            if self.store:
                for x in r: self.src |= x
                if op.startswith("buffer_"): self.data = r[0]
                else: self.data = r[1]
            else:
                self.dst = r[0]
                for x in r[1:]: self.src |= x
        elif self.ds:
            if "read" in op or "rtn" in op:
                self.dst = r[0]
                for x in r[1:]: self.src |= x
            else:
                for x in r: self.src |= x
        self.states = 1
        if op == "s_nop": self.states = int(self.ops[0], 0) + 1

def need(p, c):
    n = 0
    pv = {x for x in p.dst if x[0] in "va"}
    ps = {x for x in p.dst if x[0] == "s"}
    if p.valu:
        if pv & c.src:
            if c.dpp or c.perml: n = max(n, 2)
            if c.rdlane: n = max(n, 1)
            if c.mfma: n = max(n, 2)
            if p.trans and c.valu and not c.trans: n = max(n, 1)
        if p.dot and (pv & (c.src | c.dst)):
            same = c.dot and c.op == p.op
            if same and not (pv & c.srcAB): pass
            else: n = max(n, 3)
        if ps & c.src:
            if c.valu or c.mfma: n = max(n, 4 if c.rdlane else 2)
            if c.vmem: n = max(n, 5)
    if p.mfma:
        if c.mfma:
            if p.dst & c.srcAB: n = max(n, 8)
            if p.dst & c.srcC and p.dst != c.srcC: n = max(n, 6)
            if p.dst & c.dst and p.dst != c.srcC: n = max(n, 8)
        elif c.valu or c.vmem or c.ds:
            if p.dst & (c.src | c.dst): n = max(n, 8)
        if c.valu and (p.srcC & c.dst): n = max(n, 3)
    if p.store and len(p.data) >= 3 and (p.data & c.dst):
        n = max(n, 2 if c.valu else 1)
    return n

class Emitter:
    def __init__(self):
        self.lines = []
        self.hist = []
        self.nops = 0
    def raw(self, text):
        self.lines.append(text)
    def label(self, name, flush=True):
        self.lines.append(name + ":")
    def forget(self):
        self.hist = []
    def __call__(self, text):
        for t in text.split("\n"):
            t = t.strip()
            if not t: continue
            if t.startswith(";") or t.startswith("."):
                self.lines.append(t); continue
            if t.endswith(":"):
                self.lines.append(t); continue
            c = Ins(t)
            dist = 0; pad = 0
            for p in reversed(self.hist):
                k = need(p, c) - dist
                if k > pad: pad = k
                dist += p.states
                if dist >= 10: break
            if pad > 0:
                nop = Ins(f"s_nop {pad-1}")
                self.lines.append("  " + nop.text); self.hist.append(nop); self.nops += 1
            self.lines.append("  " + t)
            self.hist.append(c)
            if len(self.hist) > 16: self.hist = self.hist[-16:]
            if c.op in ("s_branch", "s_endpgm"): self.hist = []
    def text(self):
        return "\n".join(self.lines)
```

```python
import sys, math, struct
from emit import Emitter

NAME = "recurrent_scan__gqa_block_cached__dense_activation_relu__decode_kernel"
QA = 4096
HA = 69632
FA = 196608
RA = 262144
RS = 7424
H2 = 2560
GO = 5120
ST = 256 << 20
LDS_Q, LDS_C, LDS_ML, LDS_F, LDS_SIZE = 0, 1024, 9216, 9984, 10240
SPIN = 1 << 16

def f2u(x): return struct.unpack("<I", struct.pack("<f", x))[0]
CS = f2u((128 ** -0.5) * math.log2(math.e))
NCS = f2u(-(128 ** -0.5) * math.log2(math.e))

def gen(T=8, P=48, KC=3, stamps=False, name=NAME, wflag="", b0first=True, nocomp=0, prio=True):
    e = Emitter()
    def allred_row(regs, op):
        for sh in (8, 4, 2, 1):
            for r in regs:
                e(f"v_{op}_f32_dpp v{r}, v{r}, v{r} row_ror:{sh} row_mask:0xf bank_mask:0xf")
    def allred_rows(r, t, op):
        e(f"v_mov_b32 v{t}, v{r}")
        e(f"v_permlane16_swap_b32 v{r}, v{t}")
        e(f"v_{op}_f32 v{r}, v{r}, v{t}")
        e(f"v_mov_b32 v{t}, v{r}")
        e(f"v_permlane32_swap_b32 v{r}, v{t}")
        e(f"v_{op}_f32 v{r}, v{r}, v{t}")
    def stamp(k):
        if stamps: e(f"s_memrealtime s[{88+2*k}:{89+2*k}]")
    def stamp_store(slots, tmp, base=88):
        if not stamps: return
        e("s_waitcnt lgkmcnt(0)")
        e("s_mov_b64 exec, 1")
        e(f"s_lshl_b32 s15, s2, 7")
        e(f"s_add_u32 s15, s15, {ST}")
        e(f"v_mov_b32 v{tmp}, s15")
        for k, si in slots:
            e(f"v_mov_b32 v{tmp+2}, s{base+2*k}")
            e(f"v_mov_b32 v{tmp+3}, s{base+1+2*k}")
            e(f"global_store_dwordx2 v{tmp}, v[{tmp+2}:{tmp+3}], s[36:37] offset:{8*si}")
            e("s_nop 1")
    def flagwait(tag, v, slp):
        e(f"v_mov_b32 v{v}, 0")
        e(f"s_mov_b32 s12, {SPIN*16}")
        e(f"L_fw_{tag}:")
        e(f"ds_read_b32 v{v+1}, v{v} offset:{LDS_F}")
        e("s_sub_u32 s12, s12, 1")
        e("s_cmp_eq_u32 s12, 0")
        e("s_waitcnt lgkmcnt(0)")
        e(f"s_cbranch_scc1 L_fw_{tag}_ok")
        e(f"v_cmp_eq_u32 vcc, 0, v{v+1}")
        e(f"s_cbranch_vccz L_fw_{tag}_ok")
        e(f"s_sleep {slp}")
        e(f"s_branch L_fw_{tag}")
        e(f"L_fw_{tag}_ok:")
    def srd(base, ptr, size):
        e(f"s_mov_b32 s{base}, s{ptr}")
        e(f"s_mov_b32 s{base+1}, s{ptr+1}")
        e(f"s_mov_b32 s{base+2}, {size:#x}")
        e(f"s_mov_b32 s{base+3}, 0x20000")

    e("s_cmp_lt_u32 s2, 256")
    e("s_cbranch_scc1 L_go")
    e("s_endpgm")
    e("L_go:")
    stamp(0)
    e("s_load_dwordx16 s[16:31], s[0:1], 0")
    e("s_load_dwordx4 s[32:35], s[0:1], 64")
    e("s_load_dwordx2 s[36:37], s[0:1], 80")
    e("v_lshrrev_b32 v3, 6, v0")
    e("v_and_b32 v0, 63, v0")
    e("v_readfirstlane_b32 s3, v3")
    e("s_and_b32 s4, s2, 7")
    e("s_lshr_b32 s5, s2, 3")
    e("s_lshl_b32 s6, s4, 5")
    e("s_add_u32 s6, s6, s5")
    e("v_and_b32 v4, 15, v0")
    e("v_lshrrev_b32 v5, 4, v0")
    e("s_cmp_ge_u32 s3, 4")
    e("s_cbranch_scc1 L_helper")
    POOL = 56
    NT = 32; N = NT * 8
    e("v_lshlrev_b32 v1, 8, v4")
    e("v_lshl_add_u32 v1, v5, 4, v1")
    e("v_lshlrev_b32 v2, 10, v5")
    e("v_lshl_add_u32 v2, v4, 4, v2")
    e("s_lshl_b32 s7, s6, 19")
    e("s_lshl_b32 s8, s3, 12")
    e("s_add_u32 s7, s7, s8")
    e("s_waitcnt lgkmcnt(0)")
    srd(40, 18, 0x8000000)
    srd(44, 20, 0x8000000)
    cur = [0]
    def slot(n): return POOL + (n % P) * 4
    def issue(n):
        t, r = divmod(n, 8)
        if t != cur[0]:
            e("s_add_u32 s7, s7, 16384"); cur[0] = t
        b = slot(n)
        if r < 4: e(f"buffer_load_dwordx4 v[{b}:{b+3}], v1, s[40:43], s7 offen offset:{64*r} nt")
        else: e(f"buffer_load_dwordx4 v[{b}:{b+3}], v2, s[44:47], s7 offen offset:{256*(r-4)} nt")
    if b0first: e("s_barrier")
    for n in range(T): issue(n)
    if not b0first: e("s_barrier")
    e("s_branch L_stream")

    def layernorm(nv, xr, xl, xh):
        for k in range(4):
            e(f"v_lshlrev_b32 v{12+2*k}, 16, v{8+k}")
            e(f"v_and_b32 v{13+2*k}, 0xffff0000, v{8+k}")
        e("v_add_f32 v116, v12, v13"); e("v_add_f32 v117, v14, v15"); e("v_add_f32 v118, v16, v17"); e("v_add_f32 v119, v18, v19")
        e("v_add_f32 v116, v116, v117"); e("v_add_f32 v118, v118, v119"); e("v_add_f32 v116, v116, v118")
        for k in range(nv // 2):
            e(f"v_lshlrev_b32 v{xl+2*k}, 16, v{xr+k}")
            e(f"v_and_b32 v{xl+2*k+1}, 0xffff0000, v{xr+k}")
        allred_row([116], "add"); allred_rows(116, 117, "add")
        e(f"v_mul_f32 v116, {f2u(1/512):#x}, v116")
        for i in range(8): e(f"v_sub_f32 v{12+i}, v{12+i}, v116")
        e("v_mul_f32 v118, v12, v12"); e("v_mul_f32 v119, v13, v13")
        for i in range(2, 8): e(f"v_fmac_f32 v{118+(i&1)}, v{12+i}, v{12+i}")
        e("v_add_f32 v118, v118, v119")
        e("v_cvt_pk_bf16_f32 v116, 0, v116")
        fill = [f"v_sub_f32 v{xl+i}, v{xl+i}, v116" for i in range(nv)] + [f"v_cvt_pk_bf16_f32 v{xl+i}, 0, v{xl+i}" for i in range(nv)]
        chain = [f"v_add_f32_dpp v118, v118, v118 row_ror:{sh} row_mask:0xf bank_mask:0xf" for sh in (8, 4, 2, 1)]
        chain += ["v_mov_b32 v117, v118", "v_permlane16_swap_b32 v118, v117", "v_add_f32 v118, v118, v117",
                  "v_mov_b32 v117, v118", "v_permlane32_swap_b32 v118, v117", "v_add_f32 v118, v118, v117",
                  f"v_mul_f32 v118, {f2u(1/512):#x}, v118", "v_cvt_pk_bf16_f32 v118, 0, v118",
                  f"v_add_f32 v118, {f2u(1e-5):#x}, v118", "v_cvt_pk_bf16_f32 v118, 0, v118",
                  "v_sqrt_f32 v118, v118", "v_cvt_pk_bf16_f32 v118, 0, v118", "v_rcp_f32 v119, v118"]
        for c in chain:
            for _ in range(2):
                if fill: e(fill.pop(0))
            e(c)
        for f in fill: e(f)
        for i in range(nv): e(f"v_mul_f32 v{xh+i}, v{xl+i}, v119")
        for i in range(nv): e(f"v_fma_f32 v{xl+i}, -v{xh+i}, v118, v{xl+i}")
        for i in range(nv): e(f"v_fmac_f32 v{xh+i}, v{xl+i}, v119")
        for i in range(nv): e(f"v_cvt_pk_bf16_f32 v{xl+i}, v{xh+i}, 0")
        for i in range(nv): e(f"v_cvt_pk_bf16_f32 v{xh+i}, 0, v{xh+i}")
    def dots(nv, w, xl, xh, acc, rors, extra=0):
        for n in range(nv):
            e(f"s_waitcnt vmcnt({nv-1-n+extra})")
            for k in range(4):
                e(f"v_dot2c_f32_bf16 v{acc+2*k}, v{w+4*n+k}, v{xl+n}")
                e(f"v_dot2c_f32_bf16 v{acc+2*k+1}, v{w+4*n+k}, v{xh+n}")
        for c in range(4): e(f"v_permlane32_swap_b32 v{acc+c}, v{acc+4+c}")
        for c in range(4): e(f"v_add_f32 v{acc+c}, v{acc+c}, v{acc+4+c}")
        for c in range(2): e(f"v_permlane16_swap_b32 v{acc+c}, v{acc+2+c}")
        for c in range(2): e(f"v_add_f32 v{acc+c}, v{acc+c}, v{acc+2+c}")
        for sh in rors:
            for r in (acc, acc + 1):
                e(f"v_add_f32_dpp v{r}, v{r}, v{r} row_ror:{sh} row_mask:0xf bank_mask:0xf")
    e("L_helper:")
    if prio: e("s_setprio 3")
    e("v_lshlrev_b32 v6, 4, v0")
    e("s_sub_u32 s13, s2, 32")
    e("s_cmp_eq_u32 s3, 5")
    e("s_cbranch_scc1 L_w5")
    e("s_lshr_b32 s8, s5, 4")
    e("s_and_b32 s9, s5, 15")
    e("v_lshrrev_b32 v7, 2, v0")
    e("s_lshl_b32 s10, s8, 9")
    e("v_lshlrev_b32 v201, 5, v7")
    e("v_add_u32 v201, s10, v201")
    e("v_and_b32 v202, 3, v0")
    e("v_lshlrev_b32 v7, 17, v7")
    e("v_lshl_add_u32 v7, v202, 4, v7")
    e("s_lshl_b32 s10, s8, 21")
    e("s_lshl_b32 s11, s4, 10")
    e("s_add_u32 s10, s10, s11")
    e("s_lshl_b32 s11, s9, 6")
    e("s_add_u32 s10, s10, s11")
    e("s_waitcnt lgkmcnt(0)")
    e("s_load_dword s38, s[36:37], 0")
    srd(48, 22, 0x400000)
    e("global_load_dwordx4 v[8:11], v6, s[16:17]")
    e("global_load_dwordx4 v[20:23], v201, s[16:17]")
    e("global_load_dwordx4 v[24:27], v201, s[16:17] offset:16")
    for n in range(16):
        e(f"buffer_load_dwordx4 v[{128+4*n}:{131+4*n}], v7, s[48:51], s10 offen{wflag}")
        if n < 15: e("s_add_u32 s10, s10, 0x2000")
    e("v_mov_b32 v108, 0")
    e(f"ds_write_b32 v108, v108 offset:{LDS_F}")
    e("s_waitcnt lgkmcnt(0)")
    e("s_barrier")
    e(f"s_mul_i32 s10, s6, {RS}")
    e(f"s_add_u32 s10, s10, {RA}")
    e("v_add_u32 v108, s10, v6")
    for i in range(4): e(f"v_mov_b32 v{112+i}, -1")
    e("global_store_dwordx4 v108, v[112:115], s[36:37] sc1")
    e("global_store_dwordx4 v108, v[112:115], s[36:37] offset:1024 sc1")
    e("global_store_dwordx4 v108, v[112:115], s[36:37] offset:1536 sc1")
    for i in range(8): e(f"v_mov_b32 v{28+i}, 0")
    srd(56, 36, 0x20000000)
    e("s_lshl_b32 s10, s6, 8")
    e(f"s_add_u32 s10, s10, {QA}")
    e("v_lshlrev_b32 v203, 6, v202")
    e("v_lshl_add_u32 v203, v5, 4, v203")
    e("v_add_u32 v203, s10, v203")
    e("s_lshl_b32 s10, s4, 13")
    e(f"s_add_u32 s10, s10, {QA}")
    e("v_add_u32 v204, s10, v6")
    e("v_add_u32 v205, 4096, v204")
    e("s_waitcnt vmcnt(19)")
    stamp(5)
    layernorm(16, 20, 36, 52)
    dots(16, 128, 36, 52, 28, (8, 4), extra=3)
    e("s_waitcnt vmcnt(0) lgkmcnt(0)")
    e("s_mul_i32 s39, s38, 1664525")
    e("s_add_u32 s39, s39, 1013904223")
    e("v_mov_b32 v30, v29")
    e("v_mov_b32 v29, s39")
    e("v_mov_b32 v31, s39")
    e("s_mov_b32 exec_lo, 0x000f000f")
    e("s_mov_b32 exec_hi, 0x000f000f")
    e("global_store_dwordx4 v203, v[28:31], s[36:37] sc1")
    e("s_mov_b64 exec, -1")
    stamp(6)
    e("s_branch L_service")

    e("L_w5:")
    e(f"s_mul_i32 s10, s6, {RS}")
    e(f"s_add_u32 s10, s10, {RA+H2}")
    e("v_add_u32 v108, s10, v6")
    for i in range(4): e(f"v_mov_b32 v{112+i}, -1")
    e("s_lshl_b32 s10, s2, 2")
    e(f"s_add_u32 s10, s10, {FA}")
    e("v_lshlrev_b32 v109, 10, v0")
    e("v_add_u32 v109, s10, v109")
    e("s_and_b32 s8, s13, 7")
    e("s_lshr_b32 s9, s13, 3")
    e("v_lshrrev_b32 v7, 3, v0")
    e("s_lshl_b32 s10, s8, 7")
    e("v_lshlrev_b32 v120, 4, v7")
    e("v_add_u32 v120, s10, v120")
    e("v_and_b32 v121, 7, v0")
    e(f"v_mul_u32_u24 v7, {8*3584}, v7")
    e("v_lshl_add_u32 v7, v121, 4, v7")
    e(f"s_mul_i32 s10, s8, {64*3584}")
    e("s_lshl_b32 s11, s9, 7")
    e("s_add_u32 s10, s10, s11")
    e("s_waitcnt lgkmcnt(0)")
    e("s_load_dword s38, s[36:37], 0")
    srd(48, 28, 512 * 3584)
    e("s_cmp_ge_u32 s2, 32")
    e("s_cbranch_scc1 L_w5_mlp")
    e("s_barrier")
    e("s_branch L_w5_clr")
    e("L_w5_mlp:")
    e("global_load_dwordx4 v[8:11], v6, s[16:17]")
    e("global_load_dwordx4 v[20:23], v120, s[16:17]")
    for n in range(8):
        e(f"buffer_load_dwordx4 v[{128+4*n}:{131+4*n}], v7, s[48:51], s10 offen nt")
        if n < 7: e("s_add_u32 s10, s10, 3584")
    e("s_barrier")
    for i in range(8): e(f"v_mov_b32 v{28+i}, 0")
    e("s_mul_i32 s10, s8, 14336")
    e("s_lshl_b32 s11, s9, 9")
    e("s_add_u32 s10, s10, s11")
    e(f"s_add_u32 s10, s10, {HA}")
    e("v_lshlrev_b32 v122, 6, v121")
    e("v_lshl_add_u32 v122, v5, 4, v122")
    e("v_add_u32 v122, s10, v122")
    e("s_waitcnt vmcnt(8)")
    layernorm(8, 20, 36, 52)
    dots(8, 128, 36, 52, 28, (8,))
    e("s_waitcnt lgkmcnt(0)")
    e("s_mul_i32 s39, s38, 1664525")
    e("s_add_u32 s39, s39, 1013904223")
    e("v_mov_b32 v30, v29")
    e("v_mov_b32 v29, s39")
    e("v_mov_b32 v31, s39")
    e("s_mov_b32 exec_lo, 0x00ff00ff")
    e("s_mov_b32 exec_hi, 0x00ff00ff")
    e("global_store_dwordx4 v122, v[28:31], s[36:37] sc1")
    e("s_mov_b64 exec, -1")
    flagwait("h", 120, 8)
    e("s_lshl_b32 s10, s13, 13")
    e("v_add_u32 v120, s10, v6")
    e("v_add_u32 v121, 4096, v120")
    for r in range(8):
        e(f"global_load_dwordx4 v[{128+4*r}:{131+4*r}], v{120 + r//4}, s[30:31] offset:{1024*(r%4)} nt")
    e("v_lshrrev_b32 v122, 2, v0")
    e("v_and_b32 v122, 7, v122")
    e("v_mul_u32_u24 v122, 14336, v122")
    e("v_and_b32 v123, 3, v0")
    e("v_lshl_add_u32 v122, v123, 4, v122")
    e("s_lshl_b32 s10, s13, 6")
    e(f"s_add_u32 s10, s10, {HA}")
    e("v_add_u32 v122, s10, v122")
    e(f"s_mul_i32 s10, s13, {RS}")
    e(f"s_add_u32 s10, s10, {RA+GO}")
    e("v_lshlrev_b32 v123, 5, v0")
    e("v_add_u32 v123, s10, v123")
    for i in range(8): e(f"v_mov_b32 v{28+i}, 0")
    e(f"s_mov_b32 s12, {SPIN}")
    e("L_hpoll:")
    e("global_load_dwordx4 v[8:11], v122, s[36:37] sc1")
    e("s_sub_u32 s12, s12, 1")
    e("s_cmp_eq_u32 s12, 0")
    e("s_waitcnt vmcnt(0)")
    e("s_cbranch_scc1 L_hok")
    e("v_xor_b32 v12, s39, v9")
    e("v_xor_b32 v13, s39, v11")
    e("v_or_b32 v12, v12, v13")
    e("v_cmp_ne_u32 vcc, 0, v12")
    e("s_cbranch_vccz L_hok")
    e("s_sleep 16")
    e("s_branch L_hpoll")
    e("L_hok:")
    for sh in (8, 4):
        for r in (8, 10): e(f"v_add_f32_dpp v{r}, v{r}, v{r} row_ror:{sh} row_mask:0xf bank_mask:0xf")
    e("v_mov_b32 v9, v8"); e("v_mov_b32 v11, v10")
    e("v_permlane16_swap_b32 v8, v9"); e("v_permlane16_swap_b32 v10, v11")
    e("v_add_f32 v8, v8, v9"); e("v_add_f32 v10, v10, v11")
    e("v_max_f32 v8, 0, v8"); e("v_max_f32 v10, 0, v10")
    e("v_cvt_pk_bf16_f32 v8, v8, v10")
    for g in range(4): e(f"v_readlane_b32 s{64+g}, v8, {g}")
    for g in range(4):
        e(f"s_and_b32 s60, s{64+g}, 0xffff")
        e(f"s_lshl_b32 s61, s{64+g}, 16")
        e(f"s_lshr_b32 s62, s{64+g}, 16")
        e(f"s_and_b32 s63, s{64+g}, 0xffff0000")
        for r in range(2):
            for k in range(4):
                e(f"v_dot2c_f32_bf16 v{28+2*k}, s{60+2*r}, v{128+4*(2*g+r)+k}")
                e(f"v_dot2c_f32_bf16 v{29+2*k}, s{61+2*r}, v{128+4*(2*g+r)+k}")
    e("global_store_dwordx4 v123, v[28:31], s[36:37] sc1")
    e("global_store_dwordx4 v123, v[32:35], s[36:37] offset:16 sc1")
    e("L_w5_clr:")
    e("global_store_dwordx4 v108, v[112:115], s[36:37] sc1")
    e("global_store_dwordx4 v108, v[112:115], s[36:37] offset:1024 sc1")
    e("s_waitcnt lgkmcnt(0)")
    e("s_mul_i32 s39, s38, 1664525")
    e("s_add_u32 s39, s39, 1013904223")
    e("v_mov_b32 v116, s39")
    e("s_mov_b32 exec_hi, 0")
    e("s_waitcnt vmcnt(0)")
    e("global_store_dword v109, v116, s[36:37] sc1")
    if stamps:
        stamp(1); stamp_store([(1, 8)], 60)
    e("s_endpgm")

    e("L_service:")
    e("s_lshl_b32 s10, s6, 14")
    e("v_lshlrev_b32 v7, 12, v5")
    e("v_lshl_add_u32 v7, v4, 4, v7")
    e("v_add_u32 v7, s10, v7")
    for R in range(4):
        for cb in range(4):
            b = 64 + 16 * R + 4 * cb
            e(f"global_load_dwordx4 v[{b}:{b+3}], v7, s[24:25] offset:{1024*R+256*cb} nt")
    e("v_and_b32 v16, 1, v0")
    e("v_lshlrev_b32 v16, 4, v16")
    e("v_mov_b32 v17, 0xffff")
    e("v_lshlrev_b32 v16, v16, v17")
    e("v_lshrrev_b32 v17, 1, v4")
    for kk in range(4):
        e(f"v_cmp_eq_u32 vcc, {kk}, v17")
        e(f"v_cndmask_b32 v{20+kk}, 0, v16, vcc")
    for n in range(16): e(f"s_mov_b32 s{72+n}, {n*16*RS}")
    e(f"v_mul_u32_u24 v192, {RS}, v4")
    e(f"s_mul_i32 s10, s4, {32*RS}")
    e("s_lshr_b32 s11, s5, 3")
    e("s_mul_i32 s11, s11, 640")
    e("s_add_u32 s10, s10, s11")
    e(f"s_add_u32 s10, s10, {RA}")
    e("v_add_u32 v193, s10, v192")
    e("s_and_b32 s11, s5, 7")
    e("s_lshl_b32 s11, s11, 6")
    e("v_lshl_add_u32 v194, v5, 4, v193")
    e("v_add_u32 v194, s11, v194")
    e(f"s_mul_i32 s10, s6, {RS}")
    e(f"s_add_u32 s10, s10, {RA+H2}")
    e("v_lshlrev_b32 v195, 5, v4")
    e("v_lshl_add_u32 v195, v5, 4, v195")
    e("v_add_u32 v195, s10, v195")
    e("s_lshl_b32 s10, s2, 6")
    e(f"s_add_u32 s10, s10, {RA+H2}")
    e("v_lshl_add_u32 v196, v5, 4, v192")
    e("v_add_u32 v196, s10, v196")
    e("s_and_b32 s10, s2, 31")
    e("s_lshl_b32 s10, s10, 5")
    e("v_lshlrev_b32 v198, 3, v5")
    e("v_add_u32 v198, s10, v198")
    e("v_mov_b32 v197, 0")
    e("s_and_b32 s10, s2, 31")
    e("s_lshl_b32 s10, s10, 10")
    e(f"s_add_u32 s10, s10, {FA}")
    e("v_add_u32 v199, s10, v6")
    e("v_lshlrev_b32 v7, 2, v0")
    e(f"s_mov_b32 s12, {SPIN}")
    e("L_qpoll:")
    for rb in range(2):
        for i in range(4):
            b = 128 + 16 * rb + 4 * i
            e(f"global_load_dwordx4 v[{b}:{b+3}], v{204+rb}, s[36:37] offset:{1024*i} sc1")
    e("s_sub_u32 s12, s12, 1")
    e("s_cmp_eq_u32 s12, 0")
    e("s_waitcnt vmcnt(0)")
    e("s_cbranch_scc1 L_qok")
    tags = [129 + 2 * i for i in range(16)]
    e(f"v_min3_u32 v16, v{tags[0]}, v{tags[1]}, s39")
    e(f"v_max3_u32 v17, v{tags[0]}, v{tags[1]}, s39")
    for i in range(2, 16, 2):
        e(f"v_min3_u32 v16, v{tags[i]}, v{tags[i+1]}, v16")
        e(f"v_max3_u32 v17, v{tags[i]}, v{tags[i+1]}, v17")
    e("v_cmp_ne_u32 vcc, v16, v17")
    e("s_cbranch_vccnz L_qpoll")
    e("L_qok:")
    for i in range(4):
        e(f"v_add_f32 v{128+4*i}, v{128+4*i}, v{144+4*i}")
        e(f"v_add_f32 v{130+4*i}, v{130+4*i}, v{146+4*i}")
    for i in range(4): e(f"v_cvt_pk_bf16_f32 v{128+4*i}, v{128+4*i}, v{130+4*i}")
    e(f"ds_write2st64_b32 v7, v128, v132 offset0:{LDS_Q//256} offset1:{LDS_Q//256+1}")
    e(f"ds_write2st64_b32 v7, v136, v140 offset0:{LDS_Q//256+2} offset1:{LDS_Q//256+3}")
    e("v_mov_b32 v16, 1")
    e(f"ds_write_b32 v197, v16 offset:{LDS_F}")
    stamp(1)
    if stamps: e("s_mov_b32 s68, s12")
    e("s_cmp_ge_u32 s2, 32")
    e("s_cbranch_scc1 L_b2")
    e(f"s_mov_b32 s12, {SPIN}")
    e("L_gpoll:")
    e("s_sleep 32")
    e("global_load_dwordx4 v[8:11], v199, s[36:37] sc1")
    e("s_sub_u32 s12, s12, 1")
    e("s_cmp_eq_u32 s12, 0")
    e("s_waitcnt vmcnt(0)")
    e("s_cbranch_scc1 L_gok")
    e("v_min3_u32 v16, v8, v9, s39")
    e("v_max3_u32 v17, v8, v9, s39")
    e("v_min3_u32 v16, v10, v11, v16")
    e("v_max3_u32 v17, v10, v11, v17")
    e("v_cmp_ne_u32 vcc, v16, v17")
    e("s_cbranch_vccnz L_gpoll")
    e("L_gok:")
    def gather_sum(cnt):
        live = list(range(cnt))
        while len(live) > 1:
            nxt = []
            for a in range(0, len(live) - 1, 2):
                x, y = 128 + 4 * live[a], 128 + 4 * live[a + 1]
                e(f"v_pk_add_f32 v[{x}:{x+1}], v[{x}:{x+1}], v[{y}:{y+1}]")
                e(f"v_pk_add_f32 v[{x+2}:{x+3}], v[{x+2}:{x+3}], v[{y+2}:{y+3}]")
                nxt.append(live[a])
            if len(live) & 1: nxt.append(live[-1])
            live = nxt
        allred_row([128, 129, 130, 131], "add")
    for n in range(14):
        e(f"buffer_load_dwordx4 v[{128+4*n}:{131+4*n}], v196, s[56:59], s{72+n} offen offset:{GO-H2} sc1")
    e("global_load_dwordx2 v[18:19], v198, s[16:17]")
    e("s_waitcnt vmcnt(0)")
    gather_sum(14)
    for k in range(4): e(f"v_cvt_pk_bf16_f32 v{128+k}, 0, v{128+k}")
    for k in range(4): e(f"v_mul_f32 v{132+k}, {f2u(-math.log2(math.e)):#x}, v{128+k}")
    for k in range(4): e(f"v_exp_f32 v{132+k}, v{132+k}")
    for k in range(4): e(f"v_add_f32 v{132+k}, 1.0, v{132+k}")
    for k in range(4): e(f"v_rcp_f32 v{132+k}, v{132+k}")
    for k in range(4): e(f"v_mul_f32 v{132+k}, v{128+k}, v{132+k}")
    for k in range(4): e(f"v_cvt_pk_bf16_f32 v{56+k}, 0, v{132+k}")
    e("v_lshlrev_b32 v60, 16, v18"); e("v_and_b32 v61, 0xffff0000, v18")
    e("v_lshlrev_b32 v62, 16, v19"); e("v_and_b32 v63, 0xffff0000, v19")
    e("L_b2:")
    e(f"s_mov_b32 s12, {SPIN}")
    e("s_waitcnt vmcnt(0)")
    e("s_barrier")
    stamp(2)
    e("L_h1poll:")
    e("buffer_load_dwordx2 v[16:17], v193, s[56:59], s72 offen offset:512 sc1")
    e("buffer_load_dwordx2 v[18:19], v193, s[56:59], s73 offen offset:512 sc1")
    e("buffer_load_dwordx4 v[8:11], v194, s[56:59], s72 offen sc1")
    e("buffer_load_dwordx4 v[12:15], v194, s[56:59], s73 offen sc1")
    e("s_sub_u32 s12, s12, 1")
    e("s_waitcnt vmcnt(2)")
    e("v_min_f32 v24, v16, v18")
    allred_row([24], "min")
    e("v_sub_f32 v26, v24, v16")
    e("v_sub_f32 v28, v24, v18")
    e("v_exp_f32 v26, v26")
    e("v_exp_f32 v28, v28")
    e("s_waitcnt vmcnt(0)")
    e("v_mul_f32 v30, v26, v17")
    e("v_pk_mul_f32 v[8:9], v[8:9], v[26:27] op_sel_hi:[1,0]")
    e("v_pk_mul_f32 v[10:11], v[10:11], v[26:27] op_sel_hi:[1,0]")
    e("v_fmac_f32 v30, v28, v19")
    e("v_pk_fma_f32 v[8:9], v[12:13], v[28:29], v[8:9] op_sel_hi:[1,0,1]")
    e("v_pk_fma_f32 v[10:11], v[14:15], v[28:29], v[10:11] op_sel_hi:[1,0,1]")
    allred_row([30, 8, 9, 10, 11], "add")
    e("v_rcp_f32 v30, v30")
    e("s_cmp_eq_u32 s12, 0")
    e("v_pk_mul_f32 v[8:9], v[8:9], v[30:31] op_sel_hi:[1,0]")
    e("v_pk_mul_f32 v[10:11], v[10:11], v[30:31] op_sel_hi:[1,0]")
    e("s_cbranch_scc1 L_h1ok")
    e("v_cmp_u_f32 vcc, v8, v9")
    e("v_cmp_u_f32 s[14:15], v10, v11")
    e("s_or_b64 vcc, vcc, s[14:15]")
    e("s_cbranch_vccnz L_h1poll")
    e("L_h1ok:")
    stamp(3)
    for R in range(4): e(f"v_cvt_pk_bf16_f32 v{8+R}, v{8+R}, v{8+R}")
    for R in range(4):
        for kk in range(4): e(f"v_and_b32 v{24+4*R+kk}, v{8+R}, v{20+kk}")
    for R in range(4):
        for cb in range(4):
            b = 64 + 16 * R + 4 * cb
            d = 40 + 4 * cb
            c = "0" if R == 0 else f"v[{d}:{d+3}]"
            e(f"v_mfma_f32_16x16x32_bf16 v[{d}:{d+3}], v[{24+4*R}:{27+4*R}], v[{b}:{b+3}], {c}")
    e("s_mov_b32 exec_hi, 0")
    for cb in range(4):
        d = 40 + 4 * cb
        e(f"global_store_dwordx4 v195, v[{d}:{d+3}], s[36:37] offset:{512*cb} sc1")
    e("s_mov_b32 exec_hi, -1")
    e("s_cmp_ge_u32 s2, 32")
    e("s_cbranch_scc1 L_sv_end")
    e(f"s_mov_b32 s12, {SPIN}")
    e("L_h2poll:")
    for n in range(16):
        e(f"buffer_load_dwordx4 v[{128+4*n}:{131+4*n}], v196, s[56:59], s{72+n} offen sc1")
    e("s_sub_u32 s12, s12, 1")
    e("s_waitcnt vmcnt(0)")
    gather_sum(16)
    e("s_cmp_eq_u32 s12, 0")
    e("s_cbranch_scc1 L_h2ok")
    e("v_cmp_u_f32 vcc, v128, v129")
    e("v_cmp_u_f32 s[14:15], v130, v131")
    e("s_or_b64 vcc, vcc, s[14:15]")
    e("s_cbranch_vccnz L_h2poll")
    e("L_h2ok:")
    for k in range(4): e(f"v_cvt_pk_bf16_f32 v{128+k}, 0, v{128+k}")
    for k in range(4): e(f"v_mul_f32 v{128+k}, v{128+k}, v{56+k}")
    for k in range(4): e(f"v_cvt_pk_bf16_f32 v{128+k}, 0, v{128+k}")
    for k in range(4): e(f"v_add_f32 v{128+k}, v{128+k}, v{60+k}")
    e("v_cvt_pk_bf16_f32 v132, v128, v129")
    e("v_cvt_pk_bf16_f32 v133, v130, v131")
    e("s_mov_b32 exec_lo, 0x00010001")
    e("s_mov_b32 exec_hi, 0x00010001")
    e("global_store_dwordx2 v198, v[132:133], s[32:33]")
    e("s_cmp_lg_u32 s2, 0")
    e("s_cbranch_scc1 L_sv_end")
    e("s_mov_b64 exec, 1")
    e("v_mov_b32 v134, s39")
    e("global_store_dword v197, v134, s[36:37] sc1")
    e("L_sv_end:")
    if stamps:
        stamp(4)
        stamp_store([(0, 0), (1, 1), (2, 2), (3, 3), (4, 4), (5, 10), (6, 7)], 136)
        e("s_getreg_b32 s86, hwreg(HW_REG_XCC_ID)")
        e(f"s_sub_u32 s87, {SPIN}, s68")
        stamp_store([(0, 9)], 136, base=86)
    e("s_endpgm")

    e("L_stream:")
    Q, S, O, MC, L, M0, M1 = 4, 20, 24, 32, 33, 34, 35
    TM, T2, AL, ALO, PP, X = 36, 37, 38, 40, 44, 48
    e("v_lshrrev_b32 v42, 2, v4")
    e("v_lshlrev_b32 v42, 8, v42")
    e("v_lshl_add_u32 v42, v5, 4, v42")
    e("v_and_b32 v36, 1, v0")
    e("v_lshlrev_b32 v36, 4, v36")
    e("v_mov_b32 v37, 0xffff")
    e("v_lshlrev_b32 v36, v36, v37")
    e("v_and_b32 v37, 2, v0")
    e("v_cmp_eq_u32 vcc, 0, v37")
    e(f"v_cndmask_b32 v{M0}, 0, v36, vcc")
    e(f"v_cndmask_b32 v{M1}, v36, 0, vcc")
    for i in range(8): e(f"v_mov_b32 v{O+i}, 0")
    e(f"v_mov_b32 v{L}, 0")
    e(f"v_mov_b32 v{MC}, 0x7f7fffff")
    e(f"s_mov_b32 s9, {CS:#x}")
    I = T; C = 0; known = 0
    while I < P:
        e(f"s_waitcnt vmcnt({T-1})"); known = I - (T - 1)
        issue(I); I += 1
    stamp(1)
    flagwait("s", 36, 1)
    for r in range(4): e(f"ds_read_b128 v[{Q+4*r}:{Q+4*r+3}], v42 offset:{LDS_Q+64*r}")
    e("s_waitcnt lgkmcnt(0)")
    def softmax(last):
        e(f"v_max3_f32 v{TM}, v{S}, v{S+1}, v{S+2}")
        e(f"v_max_f32 v{TM}, v{TM}, v{S+3}")
        allred_rows(TM, T2, "max")
        e(f"v_mul_f32 v{TM}, {NCS:#x}, v{TM}")
        e(f"v_min_f32 v{TM}, v{TM}, v{MC}")
        e(f"v_sub_f32 v{AL}, v{TM}, v{MC}")
        for r in range(4): e(f"v_fma_f32 v{PP+r}, v{S+r}, s9, v{TM}")
        e(f"v_exp_f32 v{AL}, v{AL}")
        for r in range(4): e(f"v_exp_f32 v{PP+r}, v{PP+r}")
        e(f"v_mov_b32 v{MC}, v{TM}")
        for g in range(4): e(f"v_mov_b32_dpp v{ALO}, v{AL} row_newbcast:{4*g} row_mask:{1<<g:#x} bank_mask:0xf")
        for r in range(4): e(f"v_cvt_pk_bf16_f32 v{X+2*r+1}, v{PP+r}, v{PP+r}")
        for i in range(4): e(f"v_pk_mul_f32 v[{O+2*i}:{O+2*i+1}], v[{O+2*i}:{O+2*i+1}], v[{ALO}:{ALO+1}] op_sel_hi:[1,0]")
        for r in range(4):
            e(f"v_and_b32 v{X+2*r}, v{X+2*r+1}, v{M0}")
            e(f"v_and_b32 v{X+2*r+1}, v{X+2*r+1}, v{M1}")
        e(f"v_add_f32 v{PP}, v{PP}, v{PP+1}")
        e(f"v_add_f32 v{PP+2}, v{PP+2}, v{PP+3}")
        e(f"v_fma_f32 v{L}, v{L}, v{AL}, v{PP}")
        e(f"v_add_f32 v{L}, v{L}, v{PP+2}")
        if last:
            allred_rows(L, T2, "add")
            e("v_lshlrev_b32 v42, 3, v0")
            e("s_lshl_b32 s10, s3, 3")
            e("v_add_u32 v42, s10, v42")
            e("s_mov_b64 exec, 0x1111")
            e(f"ds_write_b64 v42, v[{MC}:{L}] offset:{LDS_ML}")
            e("s_mov_b64 exec, -1")
            e("s_lshl_b32 s10, s3, 11")
            e("v_lshlrev_b32 v42, 5, v0")
            e("v_add_u32 v42, s10, v42")
            e("s_lshl_b32 s10, s3, 9")
            e("v_lshlrev_b32 v43, 4, v0")
            e("v_add_u32 v36, s10, v43")
            e("s_lshl_b32 s10, s3, 5")
            e("v_mov_b32 v37, s10")
            e(f"s_mul_i32 s10, s6, {RS}")
            e("s_mul_i32 s11, s3, 640")
            e("s_add_u32 s10, s10, s11")
            e(f"s_add_u32 s10, s10, {RA}")
            e("v_add_u32 v43, s10, v43")
    def consume(n):
        t, r = divmod(n, 8)
        b = slot(n)
        if r < 4:
            c = "0" if r == 0 else f"v[{S}:{S+3}]"
            e(f"v_mfma_f32_16x16x32_bf16 v[{S}:{S+3}], v[{b}:{b+3}], v[{Q+4*r}:{Q+4*r+3}], {c}")
            if r == 3 and (nocomp != 1 or t in (0, NT - 1)): softmax(t == NT - 1)
        else:
            r -= 4
            e(f"v_mfma_f32_16x16x16_bf16 v[{O}:{O+3}], v[{X+2*r}:{X+2*r+1}], v[{b}:{b+1}], v[{O}:{O+3}]")
            e(f"v_mfma_f32_16x16x16_bf16 v[{O+4}:{O+7}], v[{X+2*r}:{X+2*r+1}], v[{b+2}:{b+3}], v[{O+4}:{O+7}]")
    while C < N:
        if I < N and I - C < P:
            e(f"s_waitcnt vmcnt({T-1})"); known = max(known, I - (T - 1))
            issue(I); I += 1
        elif C >= known:
            e(f"s_waitcnt vmcnt({I-C-1})"); known = C + 1
        k = 0
        while C < known and k < KC:
            consume(C); C += 1; k += 1
    e(f"ds_write_b128 v42, v[{O}:{O+3}] offset:{LDS_C}")
    e(f"ds_write_b128 v42, v[{O+4}:{O+7}] offset:{LDS_C+16}")
    stamp(2)
    e("s_waitcnt lgkmcnt(0)")
    e("s_barrier")
    e(f"ds_read_b128 v[4:7], v37 offset:{LDS_ML}")
    e(f"ds_read_b128 v[8:11], v37 offset:{LDS_ML+16}")
    for w in range(4): e(f"ds_read_b128 v[{56+4*w}:{59+4*w}], v36 offset:{LDS_C+2048*w}")
    e("s_waitcnt lgkmcnt(4)")
    e("v_min3_f32 v12, v4, v6, v8")
    e("v_min_f32 v12, v12, v10")
    for w in range(4): e(f"v_sub_f32 v{14+2*w}, v12, v{4+2*w}")
    for w in range(4): e(f"v_exp_f32 v{14+2*w}, v{14+2*w}")
    e("v_mul_f32 v13, v14, v5")
    for w in range(1, 4): e(f"v_fmac_f32 v13, v{14+2*w}, v{5+2*w}")
    e("s_waitcnt lgkmcnt(0)")
    e("v_pk_mul_f32 v[24:25], v[56:57], v[14:15] op_sel_hi:[1,0]")
    e("v_pk_mul_f32 v[26:27], v[58:59], v[14:15] op_sel_hi:[1,0]")
    for w in range(1, 4):
        e(f"v_pk_fma_f32 v[24:25], v[{56+4*w}:{57+4*w}], v[{14+2*w}:{15+2*w}], v[24:25] op_sel_hi:[1,0,1]")
        e(f"v_pk_fma_f32 v[26:27], v[{58+4*w}:{59+4*w}], v[{14+2*w}:{15+2*w}], v[26:27] op_sel_hi:[1,0,1]")
    e("s_mov_b32 exec_lo, 0")
    e("s_mov_b32 exec_hi, 1")
    e("v_mov_b32 v24, v12")
    e("v_mov_b32 v25, v13")
    e("s_mov_b32 exec_lo, -1")
    e("global_store_dwordx4 v43, v[24:27], s[36:37] sc1")
    if stamps:
        for w in range(4):
            e(f"s_cmp_eq_u32 s3, {w}")
            e(f"s_cbranch_scc0 L_nost{w}")
            stamp_store([(2, 12 + w)] + ([(1, 5)] if w == 0 else []) + ([(1, 6)] if w == 1 else []) + ([(1, 11)] if w == 3 else []), 60)
            e(f"L_nost{w}:")
    body = e.text()
    return body

HEAD = open("recurrent_scan__gqa_block_cached__dense_activation_relu__decode.s.ref").read().split("; Override launch geometry")[0]

def full(body, name=NAME):
    return HEAD + f"""; Override launch geometry by editing the next line (default: block=256,
; grid=ceil(out_elems/256), lds=0). Harness parses it; keep it on one line.
; @launch grid=(256,1,1) block=(384,1,1) lds={LDS_SIZE}
.amdgcn_target "amdgcn-amd-amdhsa--gfx950"
.text
.globl {name}
.p2align 8
.type {name},@function
{name}:
{body}
s_endpgm
.section .rodata,"a"
.p2align 6
.amdhsa_kernel {name}
  .amdhsa_next_free_vgpr 256
  .amdhsa_next_free_sgpr 102
  .amdhsa_accum_offset 256
  .amdhsa_group_segment_fixed_size 0
  .amdhsa_kernarg_size 88
  .amdhsa_user_sgpr_count 2
  .amdhsa_user_sgpr_kernarg_segment_ptr 1
  .amdhsa_system_sgpr_workgroup_id_x 1
.end_amdhsa_kernel
"""

if __name__ == "__main__":
    import argparse
    ap = argparse.ArgumentParser()
    ap.add_argument("--out", default="recurrent_scan__gqa_block_cached__dense_activation_relu__decode.s")
    ap.add_argument("--T", type=int, default=8)
    ap.add_argument("--P", type=int, default=48)
    ap.add_argument("--KC", type=int, default=3)
    ap.add_argument("--stamps", action="store_true")
    ap.add_argument("--wnt", action="store_true")
    ap.add_argument("--late", action="store_true")
    ap.add_argument("--nocomp", type=int, default=0)
    ap.add_argument("--noprio", action="store_true")
    a = ap.parse_args()
    open(a.out, "w").write(full(gen(a.T, a.P, a.KC, a.stamps, wflag=(" nt" if a.wnt else ""), b0first=not a.late, nocomp=a.nocomp, prio=not a.noprio)))
```
